```python
import torch

def _softmax(x, axis=-1):
    return torch.softmax(x, dim=axis)
def _gelu(x):
    return torch.nn.functional.gelu(x, approximate="tanh")
def _silu(x):
    return torch.nn.functional.silu(x)
def _sigmoid(x):
    return torch.sigmoid(x)
def _layernorm(x, axis=-1, eps=1e-5):
    m = x.mean(dim=axis, keepdim=True)
    v = x.var(dim=axis, keepdim=True, unbiased=False)
    return (x - m) / torch.sqrt(v + eps)
def _scatter_add(tgt, idx, src, axis=0):
    return tgt.clone().index_add_(axis, idx, src)
def _segment_sum(src, seg, n):
    out = torch.zeros((n,) + src.shape[1:], dtype=src.dtype)
    return out.index_add_(0, seg, src)
def _pad(x, pw):
    flat = tuple(v for pair in reversed(pw) for v in pair)
    return torch.nn.functional.pad(x, flat)

kernel_name = 'concat_heads__ssm_conv_h3__linear_kernel_hedgehog__prompt'

def setup_inputs():

    _w = (lambda a: (lambda t: t.to(torch.bfloat16) if t.is_floating_point() else t)(torch.as_tensor(a)))
    def _A_setup():
        B, S, D = 1, 2048, 1024
        ks = 4
        return {
            "q": _w((lambda *s: torch.randn(*s, dtype=torch.bfloat16) * 0.05)(B, S, D)),
            "k": _w((lambda *s: torch.randn(*s, dtype=torch.bfloat16) * 0.8)(B, S, D)),
            "v": _w((lambda *s: torch.randn(*s, dtype=torch.bfloat16) * 0.8)(B, S, D)),
            "shift_k": _w((lambda *s: torch.randn(*s, dtype=torch.bfloat16) * 0.8)(D, ks) * 0.5),
            "ssm_k": _w((lambda *s: torch.randn(*s, dtype=torch.bfloat16) * 0.8)(D, S) * (1.0 / S ** 0.5)),
            "ssm_D": _w((lambda *s: torch.randn(*s, dtype=torch.bfloat16) * 0.8)(D)),
        }
    _A_in = _A_setup()

    def _B_setup():
        B, S, D, H = 1, 2048, 1024, 32
        Dh = D // H
        return {
            "x": _w((lambda *s: torch.randn(*s, dtype=torch.bfloat16) * 0.4)(B, S, D)),
            "wqkv": _w((lambda *s: torch.randn(*s, dtype=torch.bfloat16) * 0.4)(D, 3 * D)),
            "w_phi": _w((lambda *s: torch.randn(*s, dtype=torch.bfloat16) * 0.4)(H, Dh, Dh) * (Dh ** -0.5)),
            "wo": _w((lambda *s: torch.randn(*s, dtype=torch.bfloat16) * 0.05)(D, D)),
        }
    _B_in = _B_setup()

    return {
        "A_q": _A_in["q"],
        "A_k": _A_in["k"],
        "A_v": _A_in["v"],
        "A_shift_k": _A_in["shift_k"],
        "A_ssm_k": _A_in["ssm_k"],
        "A_ssm_D": _A_in["ssm_D"],
        "B_x": _B_in["x"],
        "B_wqkv": _B_in["wqkv"],
        "B_w_phi": _B_in["w_phi"],
        "B_wo": _B_in["wo"],
    }

def reference(A_q, A_k, A_v, A_shift_k, A_ssm_k, A_ssm_D, B_x, B_wqkv, B_w_phi, B_wo):
    def _A_ref(q, k, v, shift_k, ssm_k, ssm_D):
        B, S, D = q.shape
        ks = shift_k.shape[-1]
        k_pad = _pad(k, ((0, 0), (ks - 1, 0), (0, 0)))
        k_shift = torch.zeros_like(k)
        for t in range(ks):
            k_shift = k_shift + k_pad[:, t:t + S, :] * shift_k[:, ks - 1 - t][None, None, :]
        kv = k_shift * v
        L = 2 * S
        kv_pad = _pad(kv, ((0, 0), (0, S), (0, 0)))
        kf_pad = _pad(ssm_k, ((0, 0), (0, S)))
        kv_f = (lambda x, axes=(-2,-1): torch.fft.rfft2(x.float(), dim=axes))(kv_pad[:, None, :, :], axes=(1, 2))
        kf_f = (lambda x, axes=(-2,-1): torch.fft.rfft2(x.float(), dim=axes))(kf_pad[:, None, :], axes=(1, 2))
        kf_f = (lambda x, *d: x.permute(*d))(kf_f, 1, 2, 0)
        y_f = kv_f * kf_f[None, :, :, :]
        y = (lambda x, s, axes=(-2,-1): torch.fft.irfft2(x, s=s, dim=axes).to(torch.bfloat16))(y_f, (1, L), axes=(1, 2))[:, 0, :S, :]
        y = y + kv * ssm_D[None, None, :]
        return q * y

    def _B_ref(x, wqkv, w_phi, wo):
        B, S, D = x.shape
        H = 32; Dh = D // H
        qkv = (lambda x, *d: x.permute(*d))((x @ wqkv).reshape(B, S, 3, H, Dh), 2, 0, 3, 1, 4)
        q, k, v = qkv[0], qkv[1], qkv[2]
        pq = torch.einsum("bhsd,hdf->bhsf", q, w_phi)
        pk = torch.einsum("bhsd,hdf->bhsf", k, w_phi)
        phi_q = torch.concatenate([_softmax(pq, axis=-1), _softmax(-pq, axis=-1)], axis=-1)
        phi_k = torch.concatenate([_softmax(pk, axis=-1), _softmax(-pk, axis=-1)], axis=-1)
        kv = torch.einsum("bhsf,bhsd->bhfd", phi_k, v)
        z  = torch.einsum("bhsf->bhf", phi_k)
        num = torch.einsum("bhqf,bhfd->bhqd", phi_q, kv)
        den = torch.einsum("bhqf,bhf->bhq", phi_q, z)[..., None] + 1e-6
        o = num / den
        return (lambda x, *d: x.permute(*d))(o, 0, 2, 1, 3).reshape(B, S, D) @ wo

    a = _A_ref(A_q, A_k, A_v, A_shift_k, A_ssm_k, A_ssm_D)
    b = _B_ref(B_x, B_wqkv, B_w_phi, B_wo)
    return torch.concatenate([a, b], axis=-1)
```

```python
import sys

XR_PITCH = 4608
WS_XR = 0
WS_PHIQ = 0x800000
WS_KVP = 0x1000000
KVP_STRIDE = 8448
WS_O = 0x1800000
WS_YT = 0x1C00000
WS_SIZE = 0x10000000

LOG2E = 0x3fb8aa3b


class Asm:
    def __init__(self):
        self.lines = []

    def e(self, s):
        self.lines.append("    " + s)

    def label(self, s):
        self.lines.append(s + ":")

    def c(self, s):
        self.lines.append("    ; " + s)

    def nop(self, n):
        while n > 0:
            k = min(n, 16)
            self.e(f"s_nop {k-1}")
            n -= k

    def text(self):
        return "\n".join(self.lines) + "\n"


def v(r, n=1):
    return f"v{r}" if n == 1 else f"v[{r}:{r+n-1}]"


def s(r, n=1):
    return f"s{r}" if n == 1 else f"s[{r}:{r+n-1}]"


def srd(a, dst, src, nbytes):
    a.e(f"s_mov_b32 s{dst}, s{src}")
    a.e(f"s_and_b32 s{dst+1}, s{src+1}, 0xffff")
    a.e(f"s_mov_b32 s{dst+2}, {nbytes}")
    a.e(f"s_mov_b32 s{dst+3}, 0x00020000")


def interleave(a, mains, others, lead=0):
    n = len(mains)
    m = len(others)
    oi = 0
    for i, ins in enumerate(mains):
        a.e(ins)
        tgt = min(m, ((i + 1 + lead) * m + n - 1) // n) if n else m
        while oi < tgt:
            for x in others[oi]:
                a.e(x)
            oi += 1
    while oi < m:
        for x in others[oi]:
            a.e(x)
        oi += 1


def mfma(d, A, B, C=None):
    if C is None:
        C = v(d, 4)
    return f"v_mfma_f32_16x16x32_bf16 {v(d,4)}, {v(A,4)}, {v(B,4)}, {C}"


def kernel_header(a, name):
    a.lines.append(f".globl {name}")
    a.lines.append(".p2align 8")
    a.lines.append(f".type {name},@function")
    a.label(name)


def kernel_desc(name, nvgpr, nsgpr):
    acc = (nvgpr + 3) // 4 * 4
    return f""".p2align 6
.amdhsa_kernel {name}
  .amdhsa_next_free_vgpr {nvgpr}
  .amdhsa_next_free_sgpr {nsgpr}
  .amdhsa_accum_offset {acc}
  .amdhsa_group_segment_fixed_size 0
  .amdhsa_kernarg_size 104
  .amdhsa_user_sgpr_count 2
  .amdhsa_user_sgpr_kernarg_segment_ptr 1
  .amdhsa_system_sgpr_workgroup_id_x 1
.end_amdhsa_kernel
"""


def softmax_pm(a, P0, P1, OUTP, OUTM, T, sL):
    X = T
    E = T + 8
    F = T + 16
    mx, nm, t0, t1, sp, sm = T + 24, T + 25, T + 26, T + 27, T + 28, T + 29
    src = [P0 + i for i in range(4)] + [P1 + i for i in range(4)]
    for i in range(8):
        a.e(f"v_cvt_pk_bf16_f32 {v(X+i)}, 0, {v(src[i])}")
    a.e(f"v_max3_f32 {v(mx)}, {v(X)}, {v(X+1)}, {v(X+2)}")
    a.e(f"v_min3_f32 {v(nm)}, {v(X)}, {v(X+1)}, {v(X+2)}")
    a.e(f"v_max3_f32 {v(mx)}, {v(mx)}, {v(X+3)}, {v(X+4)}")
    a.e(f"v_min3_f32 {v(nm)}, {v(nm)}, {v(X+3)}, {v(X+4)}")
    a.e(f"v_max3_f32 {v(mx)}, {v(mx)}, {v(X+5)}, {v(X+6)}")
    a.e(f"v_min3_f32 {v(nm)}, {v(nm)}, {v(X+5)}, {v(X+6)}")
    a.e(f"v_max_f32 {v(mx)}, {v(mx)}, {v(X+7)}")
    a.e(f"v_min_f32 {v(nm)}, {v(nm)}, {v(X+7)}")
    a.e(f"v_sub_f32 {v(nm)}, 0, {v(nm)}")
    a.nop(2)
    a.e(f"v_permlane16_swap_b32 {v(mx)}, {v(nm)}")
    a.e(f"v_max_f32 {v(t0)}, {v(mx)}, {v(nm)}")
    a.e(f"v_mov_b32 {v(t1)}, {v(t0)}")
    a.nop(2)
    a.e(f"v_permlane32_swap_b32 {v(t0)}, {v(t1)}")
    a.e(f"v_max_f32 {v(mx)}, {v(t0)}, {v(t1)}")
    a.e(f"v_mov_b32 {v(nm)}, {v(mx)}")
    a.nop(2)
    a.e(f"v_permlane16_swap_b32 {v(mx)}, {v(nm)}")
    a.e(f"v_mul_f32 {v(mx)}, {s(sL)}, {v(mx)}")
    a.e(f"v_mul_f32 {v(nm)}, {s(sL)}, {v(nm)}")
    for i in range(8):
        a.e(f"v_fma_f32 {v(E+i)}, {v(X+i)}, {s(sL)}, -{v(mx)}")
        a.e(f"v_fma_f32 {v(F+i)}, -{v(X+i)}, {s(sL)}, -{v(nm)}")
    for i in range(8):
        a.e(f"v_exp_f32 {v(E+i)}, {v(E+i)}")
        a.e(f"v_exp_f32 {v(F+i)}, {v(F+i)}")
    a.nop(1)
    a.e(f"v_add_f32 {v(sp)}, {v(E)}, {v(E+1)}")
    a.e(f"v_add_f32 {v(sm)}, {v(F)}, {v(F+1)}")
    for i in range(2, 8):
        a.e(f"v_add_f32 {v(sp)}, {v(sp)}, {v(E+i)}")
        a.e(f"v_add_f32 {v(sm)}, {v(sm)}, {v(F+i)}")
    a.nop(2)
    a.e(f"v_permlane16_swap_b32 {v(sp)}, {v(sm)}")
    a.e(f"v_add_f32 {v(t0)}, {v(sp)}, {v(sm)}")
    a.e(f"v_mov_b32 {v(t1)}, {v(t0)}")
    a.nop(2)
    a.e(f"v_permlane32_swap_b32 {v(t0)}, {v(t1)}")
    a.e(f"v_add_f32 {v(sp)}, {v(t0)}, {v(t1)}")
    a.e(f"v_mov_b32 {v(sm)}, {v(sp)}")
    a.nop(2)
    a.e(f"v_permlane16_swap_b32 {v(sp)}, {v(sm)}")
    a.e(f"v_rcp_f32 {v(sp)}, {v(sp)}")
    a.e(f"v_rcp_f32 {v(sm)}, {v(sm)}")
    a.nop(1)
    for i in range(8):
        a.e(f"v_mul_f32 {v(E+i)}, {v(E+i)}, {v(sp)}")
        a.e(f"v_mul_f32 {v(F+i)}, {v(F+i)}, {v(sm)}")
    for i in range(4):
        a.e(f"v_cvt_pk_bf16_f32 {v(OUTP+i)}, {v(E+2*i)}, {v(E+2*i+1)}")
        a.e(f"v_cvt_pk_bf16_f32 {v(OUTM+i)}, {v(F+2*i)}, {v(F+2*i+1)}")


K1_LDS = 122880
A_RING = 0
A_SLOT = 16384
B_RING = 49152
B_SLOT = 24576


def k1(a):
    name = "k1_kernel"
    kernel_header(a, name)
    SX, SW, SWS, SPHI, SK, SV, SSH = 4, 8, 12, 16, 20, 24, 28
    s_w, s_wm, s_wh, s_rb, s_cg, s_mA, s_mB, s_kA, s_kB, s_L, s_t, s_t2, s_head = range(32, 45)
    a.e("s_cmp_ge_u32 s2, 256")
    a.e("s_cbranch_scc1 K1_END")
    a.e("s_load_dwordx2 s[60:61], s[0:1], 48")
    a.e("s_load_dwordx2 s[62:63], s[0:1], 56")
    a.e("s_load_dwordx2 s[64:65], s[0:1], 96")
    a.e("s_load_dwordx2 s[66:67], s[0:1], 64")
    a.e("s_load_dwordx4 s[68:71], s[0:1], 8")
    a.e("s_load_dwordx2 s[72:73], s[0:1], 24")
    ACC = 0
    F0 = 96
    F1 = 136
    WPHI = 176
    VGA = 184
    VGB = 188
    VLA = 194
    VLB = 196
    VLB2 = 198
    VLANE = 200
    VT = 201
    VTID = 210
    a.e(f"v_mov_b32 {v(VTID)}, v0")
    a.e(f"v_and_b32 {v(VLANE)}, 63, v0")
    a.e(f"v_lshrrev_b32 {v(VT)}, 6, v0")
    a.nop(1)
    a.e(f"v_readfirstlane_b32 {s(s_w)}, {v(VT)}")
    a.e(f"s_mov_b32 {s(s_L)}, {LOG2E}")
    a.e(f"s_and_b32 {s(s_t)}, s2, 7")
    a.e(f"s_lshr_b32 {s(s_t2)}, s2, 3")
    a.e(f"s_and_b32 {s(s_rb)}, {s(s_t)}, 1")
    a.e(f"s_lshl_b32 {s(s_rb)}, {s(s_rb)}, 3")
    a.e(f"s_and_b32 {s(s_cg)}, {s(s_t2)}, 7")
    a.e(f"s_add_u32 {s(s_rb)}, {s(s_rb)}, {s(s_cg)}")
    a.e(f"s_lshr_b32 {s(s_cg)}, {s(s_t)}, 1")
    a.e(f"s_lshl_b32 {s(s_cg)}, {s(s_cg)}, 2")
    a.e(f"s_lshr_b32 {s(s_t2)}, {s(s_t2)}, 3")
    a.e(f"s_add_u32 {s(s_cg)}, {s(s_cg)}, {s(s_t2)}")
    a.e(f"s_lshr_b32 {s(s_wm)}, {s(s_w)}, 1")
    a.e(f"s_and_b32 {s(s_wh)}, {s(s_w)}, 1")
    a.e(f"s_lshl_b32 {s(s_head)}, {s(s_cg)}, 1")
    a.e(f"s_add_u32 {s(s_head)}, {s(s_head)}, {s(s_wh)}")
    a.e(f"s_lshl_b32 {s(s_mA)}, {s(s_w)}, 12")
    a.e(f"s_lshl_b32 {s(s_mB)}, {s(s_w)}, 11")
    a.e(f"s_add_u32 {s(s_mB)}, {s(s_mB)}, {B_RING}")
    a.e("s_waitcnt lgkmcnt(0)")
    srd(a, SX, 60, 4194304)
    srd(a, SW, 62, 6291456)
    srd(a, SWS, 64, WS_SIZE)
    srd(a, SPHI, 66, 65536)
    srd(a, SK, 68, 4194304)
    srd(a, SV, 70, 4194304)
    srd(a, SSH, 72, 8192)

    t0, t1, t2, t3 = VT, VT + 1, VT + 2, VT + 3
    a.e(f"s_lshl_b32 {s(s_t)}, {s(s_rb)}, 7")
    a.e(f"s_lshl_b32 {s(s_t2)}, {s(s_w)}, 5")
    a.e(f"s_add_u32 {s(s_t)}, {s(s_t)}, {s(s_t2)}")
    a.e(f"v_lshrrev_b32 {v(t0)}, 3, {v(VLANE)}")
    a.e(f"v_add_u32 {v(t0)}, {s(s_t)}, {v(t0)}")
    a.e(f"v_lshlrev_b32 {v(t0)}, 11, {v(t0)}")
    a.e(f"v_lshrrev_b32 {v(t1)}, 4, {v(VLANE)}")
    a.e(f"v_and_b32 {v(t2)}, 7, {v(VLANE)}")
    for j in range(4):
        a.e(f"v_add_u32 {v(t3)}, {4*(j&1)}, {v(t1)}")
        a.e(f"v_xor_b32 {v(t3)}, {v(t3)}, {v(t2)}")
        a.e(f"v_lshlrev_b32 {v(t3)}, 4, {v(t3)}")
        a.e(f"v_add_u32 {v(t3)}, {v(t3)}, {v(t0)}")
        a.e(f"v_add_u32 {v(VGA+j)}, {j*8*2048}, {v(t3)}")
    a.e(f"s_lshl_b32 {s(s_t)}, {s(s_w)}, 4")
    a.e(f"v_lshrrev_b32 {v(t0)}, 3, {v(VLANE)}")
    a.e(f"v_add_u32 {v(t0)}, {s(s_t)}, {v(t0)}")
    a.e(f"s_movk_i32 {s(s_t2)}, 6144")
    a.e(f"v_mul_lo_u32 {v(t0)}, {v(t0)}, {s(s_t2)}")
    a.e(f"s_lshl_b32 {s(s_t)}, {s(s_cg)}, 7")
    a.e(f"v_add_u32 {v(t0)}, {s(s_t)}, {v(t0)}")
    a.e(f"v_bfe_u32 {v(t1)}, {v(VLANE)}, 4, 1")
    a.e(f"v_bfe_u32 {v(t2)}, {v(VLANE)}, 1, 2")
    for jj in range(2):
        a.e(f"v_or_b32 {v(t3)}, {jj<<1}, {v(t1)}")
        a.e(f"v_xor_b32 {v(t3)}, {v(t3)}, {v(t2)}")
        a.e(f"v_lshlrev_b32 {v(t3)}, 1, {v(t3)}")
        a.e(f"v_and_b32 {v(VT+4)}, 1, {v(VLANE)}")
        a.e(f"v_or_b32 {v(t3)}, {v(t3)}, {v(VT+4)}")
        a.e(f"v_lshlrev_b32 {v(t3)}, 4, {v(t3)}")
        a.e(f"v_add_u32 {v(t3)}, {v(t3)}, {v(t0)}")
        for t in range(3):
            a.e(f"v_add_u32 {v(VGB+jj*3+t)}, {jj*8*6144 + t*2048}, {v(t3)}")

    def dma_stage(st):
        sl = st % 3
        g = []
        for j in range(4):
            g.append([f"s_add_u32 m0, {s(s_mA)}, {A_RING + sl*A_SLOT + j*1024}",
                      "s_nop 0",
                      f"buffer_load_dwordx4 {v(VGA+j)}, {s(SX,4)}, {s(s_kA)} offen lds"])
        for jj in range(2):
            for t in range(3):
                g.append([f"s_add_u32 m0, {s(s_mB)}, {sl*B_SLOT + t*8192 + jj*1024}",
                          "s_nop 0",
                          f"buffer_load_dwordx4 {v(VGB+jj*3+t)}, {s(SW,4)}, {s(s_kB)} offen lds"])
        g.append([f"s_add_u32 {s(s_kA)}, {s(s_kA)}, 128",
                  f"s_add_u32 {s(s_kB)}, {s(s_kB)}, {64*6144}"])
        return g

    a.e(f"s_mov_b32 {s(s_kA)}, 0")
    a.e(f"s_mov_b32 {s(s_kB)}, 0")
    for st in range(3):
        for grp in dma_stage(st):
            for x in grp:
                a.e(x)

    WT = F1
    a.e(f"v_lshrrev_b32 {v(t0)}, 4, {v(VLANE)}")
    a.e(f"v_lshlrev_b32 {v(t0)}, 8, {v(t0)}")
    a.e(f"v_and_b32 {v(t1)}, 15, {v(VLANE)}")
    a.e(f"v_lshlrev_b32 {v(t1)}, 1, {v(t1)}")
    a.e(f"v_add_u32 {v(t0)}, {v(t0)}, {v(t1)}")
    a.e(f"s_lshl_b32 {s(s_t)}, {s(s_head)}, 11")
    for ft in range(2):
        for j in range(8):
            d = j if j < 4 else 16 + j - 4
            a.e(f"buffer_load_ushort {v(WT+ft*8+j)}, {v(t0)}, {s(SPHI,4)}, {s(s_t)} offen offset:{d*64 + ft*32}")

    a.e(f"v_and_b32 {v(t0)}, 15, {v(VLANE)}")
    a.e(f"v_lshrrev_b32 {v(t1)}, 4, {v(VLANE)}")
    a.e(f"v_lshrrev_b32 {v(t2)}, 1, {v(t0)}")
    a.e(f"v_xor_b32 {v(t2)}, {v(t2)}, {v(t1)}")
    a.e(f"v_lshlrev_b32 {v(t2)}, 4, {v(t2)}")
    a.e(f"s_lshl_b32 {s(s_t)}, {s(s_wm)}, 6")
    a.e(f"v_add_u32 {v(t3)}, {s(s_t)}, {v(t0)}")
    a.e(f"v_lshlrev_b32 {v(t3)}, 7, {v(t3)}")
    a.e(f"v_add_u32 {v(VLA)}, {v(t3)}, {v(t2)}")
    a.e(f"v_xor_b32 {v(VLA+1)}, 64, {v(VLA)}")
    a.e(f"v_bfe_u32 {v(t0)}, {v(VLANE)}, 2, 2")
    a.e(f"v_lshrrev_b32 {v(t2)}, 1, {v(t0)}")
    a.e(f"v_and_b32 {v(t3)}, 1, {v(t1)}")
    a.e(f"v_lshlrev_b32 {v(t3)}, 1, {v(t3)}")
    a.e(f"v_or_b32 {v(t2)}, {v(t2)}, {v(t3)}")
    a.e(f"s_lshl_b32 {s(s_t)}, {s(s_wh)}, 1")
    a.e(f"v_xor_b32 {v(t2)}, {s(s_t)}, {v(t2)}")
    a.e(f"v_lshlrev_b32 {v(t2)}, 5, {v(t2)}")
    a.e(f"v_lshlrev_b32 {v(t3)}, 3, {v(t1)}")
    a.e(f"v_add_u32 {v(t3)}, {v(t3)}, {v(t0)}")
    a.e(f"v_lshlrev_b32 {v(t3)}, 7, {v(t3)}")
    a.e(f"v_add_u32 {v(t2)}, {v(t2)}, {v(t3)}")
    a.e(f"v_and_b32 {v(t3)}, 3, {v(VLANE)}")
    a.e(f"v_lshlrev_b32 {v(t3)}, 3, {v(t3)}")
    a.e(f"v_add_u32 {v(t2)}, {v(t2)}, {v(t3)}")
    a.e(f"v_add_u32 {v(VLB)}, {B_RING}, {v(t2)}")
    a.e(f"v_xor_b32 {v(VLB+1)}, 32, {v(VLB)}")
    a.e(f"v_add_u32 {v(VLB2)}, {2*B_SLOT}, {v(VLB)}")
    a.e(f"v_add_u32 {v(VLB2+1)}, {2*B_SLOT}, {v(VLB+1)}")

    PK = 0
    PV = 28
    PW = 44
    PKF = 60
    PWF = 67
    PVF = 71
    PA = 75
    PP = 79
    POUT = 84
    PADR = 100
    a.c("conv prep")
    a.e(f"s_lshr_b32 {s(s_t)}, s2, 4")
    a.e(f"s_lshl_b32 {s(s_t)}, {s(s_t)}, 7")
    a.e(f"s_and_b32 {s(s_t2)}, s2, 15")
    a.e(f"s_lshl_b32 {s(s_t2)}, {s(s_t2)}, 6")
    a.e(f"v_lshrrev_b32 {v(PADR)}, 3, {v(VTID)}")
    a.e(f"v_lshlrev_b32 {v(PADR)}, 2, {v(PADR)}")
    a.e(f"v_add_u32 {v(PADR)}, {s(s_t)}, {v(PADR)}")
    a.e(f"v_and_b32 {v(PADR+1)}, 7, {v(VTID)}")
    a.e(f"v_lshlrev_b32 {v(PADR+1)}, 3, {v(PADR+1)}")
    a.e(f"v_add_u32 {v(PADR+1)}, {s(s_t2)}, {v(PADR+1)}")
    a.e(f"v_lshlrev_b32 {v(PADR+2)}, 11, {v(PADR)}")
    a.e(f"v_lshlrev_b32 {v(PADR+3)}, 1, {v(PADR+1)}")
    a.e(f"v_add_u32 {v(PADR+2)}, {v(PADR+2)}, {v(PADR+3)}")
    a.e(f"v_subrev_u32 {v(PADR+3)}, {3*2048}, {v(PADR+2)}")
    for i in range(2):
        a.e(f"buffer_load_dwordx4 {v(PK+4*i,4)}, {v(PADR+3)}, {s(SK,4)}, 0 offen offset:{i*2048}")
    a.e(f"v_subrev_u32 {v(PADR+3)}, {1*2048}, {v(PADR+2)}")
    a.e(f"buffer_load_dwordx4 {v(PK+8,4)}, {v(PADR+3)}, {s(SK,4)}, 0 offen")
    for i in range(2):
        a.e(f"buffer_load_dwordx4 {v(PK+12+4*i,4)}, {v(PADR+2)}, {s(SK,4)}, 0 offen offset:{i*2048}")
        a.e(f"buffer_load_dwordx4 {v(PV+4*i,4)}, {v(PADR+2)}, {s(SV,4)}, 0 offen offset:{i*2048}")
    a.e(f"v_add_u32 {v(PADR+3)}, {2*2048}, {v(PADR+2)}")
    for i in range(2):
        a.e(f"buffer_load_dwordx4 {v(PK+20+4*i,4)}, {v(PADR+3)}, {s(SK,4)}, 0 offen offset:{i*2048}")
        a.e(f"buffer_load_dwordx4 {v(PV+8+4*i,4)}, {v(PADR+3)}, {s(SV,4)}, 0 offen offset:{i*2048}")
    a.e(f"v_lshlrev_b32 {v(PADR+3)}, 3, {v(PADR+1)}")
    for i in range(4):
        a.e(f"buffer_load_dwordx4 {v(PW+4*i,4)}, {v(PADR+3)}, {s(SSH,4)}, 0 offen offset:{i*16}")
    a.e(f"s_movk_i32 {s(s_t2)}, {XR_PITCH}")
    a.e(f"v_mul_lo_u32 {v(PADR+4)}, {v(PADR+1)}, {s(s_t2)}")
    a.e(f"v_lshlrev_b32 {v(PADR+5)}, 1, {v(PADR)}")
    a.e(f"v_sub_u32 {v(PADR+4)}, {v(PADR+4)}, {v(PADR+5)}")
    a.e(f"v_add_u32 {v(PADR+4)}, {WS_XR + 2*2044}, {v(PADR+4)}")
    a.e("s_waitcnt vmcnt(0)")
    for ft in range(2):
        for jp in range(4):
            a.e(f"v_lshl_or_b32 {v(WPHI+ft*4+jp)}, {v(WT+ft*8+2*jp+1)}, 16, {v(WT+ft*8+2*jp)}")

    def unpack(dst, srcreg, hi):
        if hi:
            a.e(f"v_and_b32 {v(dst)}, 0xffff0000, {v(srcreg)}")
        else:
            a.e(f"v_lshlrev_b32 {v(dst)}, 16, {v(srcreg)}")

    for ch in range(8):
        for r in range(7):
            unpack(PKF + r, PK + 4 * r + ch // 2, ch & 1)
        for tp in range(4):
            unpack(PWF + tp, PW + 2 * ch + tp // 2, tp & 1)
        for r in range(4):
            unpack(PVF + r, PV + 4 * r + ch // 2, ch & 1)
        for r in range(4):
            a.e(f"v_mul_f32 {v(PP+r)}, {v(PKF+r)}, {v(PWF+3)}")
        for r in range(4):
            a.e(f"v_cvt_pk_bf16_f32 {v(PA+r)}, 0, {v(PP+r)}")
        for t in range(1, 4):
            for r in range(4):
                a.e(f"v_mul_f32 {v(PP+r)}, {v(PKF+r+t)}, {v(PWF+3-t)}")
            for r in range(4):
                a.e(f"v_cvt_pk_bf16_f32 {v(PP+r)}, 0, {v(PP+r)}")
            for r in range(4):
                a.e(f"v_add_f32 {v(PA+r)}, {v(PA+r)}, {v(PP+r)}")
            for r in range(4):
                a.e(f"v_cvt_pk_bf16_f32 {v(PA+r)}, 0, {v(PA+r)}")
        for r in range(4):
            a.e(f"v_mul_f32 {v(PA+r)}, {v(PA+r)}, {v(PVF+r)}")
        a.e(f"v_cvt_pk_bf16_f32 {v(POUT+2*ch)}, {v(PA+3)}, {v(PA+2)}")
        a.e(f"v_cvt_pk_bf16_f32 {v(POUT+2*ch+1)}, {v(PA+1)}, {v(PA+0)}")
    for ch in range(8):
        a.e(f"buffer_store_dwordx2 {v(POUT+2*ch,2)}, {v(PADR+4)}, {s(SWS,4)}, 0 offen")
        if ch < 7:
            a.e(f"v_add_u32 {v(PADR+4)}, {XR_PITCH}, {v(PADR+4)}")
    a.e("s_cmp_lt_u32 s2, 16")
    a.e("s_cbranch_scc0 K1_NOPAD")
    a.e(f"v_lshrrev_b32 {v(PADR)}, 2, {v(VTID)}")
    a.e(f"s_lshl_b32 {s(s_t)}, s2, 6")
    a.e(f"v_add_u32 {v(PADR)}, {s(s_t)}, {v(PADR)}")
    a.e(f"v_mul_lo_u32 {v(PADR)}, {v(PADR)}, {s(s_t2)}")
    a.e(f"v_and_b32 {v(PADR+1)}, 3, {v(VTID)}")
    a.e(f"v_lshlrev_b32 {v(PADR+1)}, 7, {v(PADR+1)}")
    a.e(f"v_add_u32 {v(PADR)}, {v(PADR)}, {v(PADR+1)}")
    a.e(f"v_add_u32 {v(PADR)}, {WS_XR + 4096}, {v(PADR)}")
    for i in range(4):
        a.e(f"v_mov_b32 {v(PK+i)}, 0")
    for i in range(8):
        a.e(f"buffer_store_dwordx4 {v(PK,4)}, {v(PADR)}, {s(SWS,4)}, 0 offen offset:{16*i}")
    a.label("K1_NOPAD")

    def frag_reads(F, st, ks):
        sl = st % 3
        g = []
        for am in range(4):
            g.append([f"ds_read_b128 {v(F+4*am,4)}, {v(VLA+ks)} offset:{A_RING + sl*A_SLOT + am*2048}"])
        for t in range(3):
            for nt in range(2):
                for hf in range(2):
                    if sl < 2:
                        base, off = VLB + nt, sl * B_SLOT
                    else:
                        base, off = VLB2 + nt, 0
                    off += t * 8192 + ks * 4096 + hf * 512
                    g.append([f"ds_read_b64_tr_b16 {v(F+16+(t*2+nt)*4+2*hf,2)}, {v(base)} offset:{off}"])
        return g

    def mfmas(F, first):
        L = []
        for am in range(4):
            for t in range(3):
                for nt in range(2):
                    d = ACC + (am * 6 + t * 2 + nt) * 4
                    A_ = F + 4 * am
                    B_ = F + 16 + (t * 2 + nt) * 4
                    C = "0" if first else None
                    if t < 2:
                        L.append(mfma(d, B_, A_, C))
                    else:
                        L.append(mfma(d, A_, B_, C))
        return L

    a.c("main loop")
    a.e("s_waitcnt vmcnt(0)")
    a.e("s_barrier")
    for grp in frag_reads(F0, 0, 0):
        for x in grp:
            a.e(x)
    a.e("s_waitcnt lgkmcnt(0)")
    NIT = 16
    for it in range(NIT):
        a.c(f"iter {it} phase X")
        interleave(a, mfmas(F0, it == 0), frag_reads(F1, it, 1), lead=6)
        if it < NIT - 1:
            if it + 2 <= NIT - 1:
                a.e("s_waitcnt vmcnt(10) lgkmcnt(0)")
            else:
                a.e("s_waitcnt vmcnt(0) lgkmcnt(0)")
            a.e("s_barrier")
        else:
            a.e("s_waitcnt lgkmcnt(0)")
        a.c(f"iter {it} phase Y")
        oth = []
        if it + 1 < NIT:
            rd = frag_reads(F0, it + 1, 0)
        else:
            rd = []
        dm = dma_stage(it + 3) if it + 3 < NIT else []
        oth = rd + dm
        interleave(a, mfmas(F1, False), oth, lead=4)
        a.e("s_waitcnt lgkmcnt(0)")

    a.c("epilogue")
    a.e("s_barrier")
    a.nop(8)
    VF = F0
    QF = F0 + 16
    P0 = F0 + 20
    P1 = F0 + 24
    OP = F0 + 28
    OM = F0 + 32
    TS = F1
    ONES = F1 + 32
    PITCH = 160
    for ks2 in range(2):
        for nt in range(2):
            for h2 in range(2):
                accv = ACC + ((2 * ks2 + h2) * 6 + 4 + nt) * 4
                a.e(f"v_cvt_pk_bf16_f32 {v(VF+(ks2*2+nt)*4+2*h2)}, {v(accv)}, {v(accv+1)}")
                a.e(f"v_cvt_pk_bf16_f32 {v(VF+(ks2*2+nt)*4+2*h2+1)}, {v(accv+2)}, {v(accv+3)}")
    for i in range(4):
        a.e(f"v_mov_b32 {v(ONES+i)}, 0x3f803f80")
    VQ = VT
    VKW = VT + 1
    VKR = VT + 2
    a.e(f"s_lshl_b32 {s(s_t)}, {s(s_head)}, 7")
    a.e(f"s_lshl_b32 {s(s_t2)}, {s(s_rb)}, 3")
    a.e(f"s_add_u32 {s(s_t)}, {s(s_t)}, {s(s_t2)}")
    a.e(f"s_lshl_b32 {s(s_t2)}, {s(s_wm)}, 2")
    a.e(f"s_add_u32 {s(s_t)}, {s(s_t)}, {s(s_t2)}")
    a.e(f"s_lshl_b32 {s(s_t)}, {s(s_t)}, 11")
    a.e(f"s_add_u32 {s(s_t)}, {s(s_t)}, {WS_PHIQ}")
    a.e(f"v_lshlrev_b32 {v(VQ)}, 4, {v(VLANE)}")
    a.e(f"v_add_u32 {v(VQ)}, {s(s_t)}, {v(VQ)}")
    a.e(f"s_mul_i32 {s(s_t)}, {s(s_w)}, 10240")
    a.e(f"v_and_b32 {v(t3)}, 15, {v(VLANE)}")
    a.e(f"s_movk_i32 {s(s_t2)}, {PITCH}")
    a.e(f"v_mul_lo_u32 {v(VKW)}, {v(t3)}, {s(s_t2)}")
    a.e(f"v_lshrrev_b32 {v(t3)}, 4, {v(VLANE)}")
    a.e(f"v_lshlrev_b32 {v(VT+4)}, 3, {v(t3)}")
    a.e(f"v_add_u32 {v(VKW)}, {v(VKW)}, {v(VT+4)}")
    a.e(f"v_add_u32 {v(VKW)}, {s(s_t)}, {v(VKW)}")
    a.e(f"v_lshrrev_b32 {v(t3)}, 2, {v(VLANE)}")
    a.e(f"v_mul_lo_u32 {v(VKR)}, {v(t3)}, {s(s_t2)}")
    a.e(f"v_and_b32 {v(t3)}, 3, {v(VLANE)}")
    a.e(f"v_lshlrev_b32 {v(t3)}, 3, {v(t3)}")
    a.e(f"v_add_u32 {v(VKR)}, {v(VKR)}, {v(t3)}")
    a.e(f"v_add_u32 {v(VKR)}, {s(s_t)}, {v(VKR)}")

    for t in range(2):
        for am in range(4):
            for nt in range(2):
                ac = ACC + (am * 6 + t * 2 + nt) * 4
                a.e(f"v_cvt_pk_bf16_f32 {v(QF+2*nt)}, {v(ac)}, {v(ac+1)}")
                a.e(f"v_cvt_pk_bf16_f32 {v(QF+2*nt+1)}, {v(ac+2)}, {v(ac+3)}")
            a.nop(2)
            a.e(mfma(P0, WPHI, QF, "0"))
            a.e(mfma(P1, WPHI + 4, QF, "0"))
            a.nop(9)
            softmax_pm(a, P0, P1, OP, OM, TS, s_L)
            if t == 0:
                a.e(f"buffer_store_dwordx4 {v(OP,4)}, {v(VQ)}, {s(SWS,4)}, 0 offen offset:{(am&1)*2048}")
                a.e(f"buffer_store_dwordx4 {v(OM,4)}, {v(VQ)}, {s(SWS,4)}, 0 offen offset:{(am&1)*2048+1024}")
                if am == 1:
                    a.e(f"v_add_u32 {v(VQ)}, 4096, {v(VQ)}")
                a.nop(2)
            else:
                for sg_, O_ in ((0, OP), (1, OM)):
                    for ft in range(2):
                        a.e(f"ds_write_b64 {v(VKW)}, {v(O_+2*ft,2)} offset:{am*16*PITCH + (sg_*32+ft*16)*2}")
                a.nop(2)
    a.e("s_waitcnt lgkmcnt(0)")
    AK = F1
    KV = ACC
    for ftile in range(4):
        for ks2 in range(2):
            for hf in range(2):
                a.e(f"ds_read_b64_tr_b16 {v(AK+(ftile*2+ks2)*4+2*hf,2)}, {v(VKR)} offset:{(32*ks2+16*hf)*PITCH + ftile*32}")
    a.e("s_waitcnt lgkmcnt(0)")
    for ftile in range(4):
        for dt in range(3):
            for ks2 in range(2):
                B_ = VF + (ks2 * 2 + dt) * 4 if dt < 2 else ONES
                a.e(mfma(KV + (ftile * 3 + dt) * 4, AK + (ftile * 2 + ks2) * 4, B_, "0" if ks2 == 0 else None))
    a.nop(9)
    VC = VT + 3
    a.e(f"s_mul_i32 {s(s_t)}, {s(s_wh)}, 12288")
    a.e(f"s_add_u32 {s(s_t)}, {s(s_t)}, 49152")
    a.e(f"v_lshlrev_b32 {v(VC)}, 4, {v(VLANE)}")
    a.e(f"v_add_u32 {v(VC)}, {s(s_t)}, {v(VC)}")
    a.e(f"s_cmp_eq_u32 {s(s_wm)}, 0")
    a.e("s_cbranch_scc1 K1_WM0")
    for i in range(12):
        a.e(f"ds_write_b128 {v(VC)}, {v(KV+4*i,4)} offset:{i*1024}")
    a.e("s_waitcnt lgkmcnt(0)")
    a.e("s_barrier")
    a.e("s_branch K1_END")
    a.label("K1_WM0")
    a.e("s_barrier")
    RB = F0
    for i in range(12):
        a.e(f"ds_read_b128 {v(RB+4*i,4)}, {v(VC)} offset:{i*1024}")
    a.e("s_waitcnt lgkmcnt(0)")
    for i in range(48):
        a.e(f"v_add_f32 {v(KV+i)}, {v(KV+i)}, {v(RB+i)}")
    a.e(f"s_lshl_b32 {s(s_t)}, {s(s_head)}, 4")
    a.e(f"s_add_u32 {s(s_t)}, {s(s_t)}, {s(s_rb)}")
    a.e(f"s_mul_i32 {s(s_t)}, {s(s_t)}, {KVP_STRIDE}")
    a.e(f"s_add_u32 {s(s_t)}, {s(s_t)}, {WS_KVP}")
    a.e(f"v_lshlrev_b32 {v(VC)}, 4, {v(VLANE)}")
    a.e(f"v_add_u32 {v(VC)}, {s(s_t)}, {v(VC)}")
    for ftile in range(4):
        for dt in range(2):
            a.e(f"buffer_store_dwordx4 {v(KV+(ftile*3+dt)*4,4)}, {v(VC)}, {s(SWS,4)}, 0 offen offset:{(ftile*2+dt)*1024 if (ftile*2+dt) < 4 else 0}"
                if (ftile * 2 + dt) < 4 else
                f"buffer_store_dwordx4 {v(KV+(ftile*3+dt)*4,4)}, {v(VC+1)}, {s(SWS,4)}, 0 offen offset:{(ftile*2+dt-4)*1024}")
            if ftile * 2 + dt == 0:
                a.e(f"v_add_u32 {v(VC+1)}, 4096, {v(VC)}")
    a.e(f"v_lshrrev_b32 {v(VC+2)}, 4, {v(VLANE)}")
    a.e(f"v_lshlrev_b32 {v(VC+2)}, 4, {v(VC+2)}")
    a.e(f"s_add_u32 {s(s_t)}, {s(s_t)}, 8192")
    a.e(f"v_add_u32 {v(VC+2)}, {s(s_t)}, {v(VC+2)}")
    a.e(f"v_and_b32 {v(VC+3)}, 15, {v(VLANE)}")
    a.e(f"v_cmp_eq_u32 vcc, 0, {v(VC+3)}")
    a.e("s_and_saveexec_b64 s[50:51], vcc")
    for ftile in range(4):
        a.e(f"buffer_store_dwordx4 {v(KV+(ftile*3+2)*4,4)}, {v(VC+2)}, {s(SWS,4)}, 0 offen offset:{ftile*64}")
    a.e("s_mov_b64 exec, s[50:51]")
    a.label("K1_END")
    a.e("s_endpgm")
    return kernel_desc(name, 216, 80)


HC_BYTES = 4352
XC_BYTES = 4608 + 32
CH_BYTES = 2 * HC_BYTES + 128 + 4 * XC_BYTES + 128
K2_FRAG = 4 * 27648
K2_LDS = 4 * 27648 + 6144


def k2(a):
    name = "k2_kernel"
    kernel_header(a, name)
    SWS, SH, SD = 4, 8, 12
    s_w, s_head, s_tb, s_ch, s_t, s_t2, s_lb, s_m = range(32, 40)
    CHB = 27648
    H0 = 0
    H1 = HC_BYTES + 128
    X0 = 2 * HC_BYTES + 256
    assert X0 + 4 * XC_BYTES <= CHB
    a.e("s_cmp_ge_u32 s2, 256")
    a.e("s_cbranch_scc1 K2_END")
    a.e("s_load_dwordx2 s[60:61], s[0:1], 96")
    a.e("s_load_dwordx4 s[64:67], s[0:1], 32")
    VLANE = 250
    VT = 240
    t0, t1, t2, t3 = VT, VT + 1, VT + 2, VT + 3
    a.e(f"v_and_b32 {v(VLANE)}, 63, v0")
    a.e(f"v_lshrrev_b32 {v(VT)}, 6, v0")
    a.nop(1)
    a.e(f"v_readfirstlane_b32 {s(s_w)}, {v(VT)}")
    a.e(f"s_and_b32 {s(s_t)}, s2, 7")
    a.e(f"s_lshl_b32 {s(s_head)}, {s(s_t)}, 2")
    a.e(f"s_bfe_u32 {s(s_t)}, s2, 0x20003")
    a.e(f"s_add_u32 {s(s_head)}, {s(s_head)}, {s(s_t)}")
    a.e(f"s_lshr_b32 {s(s_tb)}, s2, 5")
    a.e(f"s_lshl_b32 {s(s_ch)}, s2, 2")
    a.e(f"s_add_u32 {s(s_ch)}, {s(s_ch)}, {s(s_w)}")
    a.e(f"s_mul_i32 {s(s_lb)}, {s(s_w)}, {CHB}")
    a.e("s_waitcnt lgkmcnt(0)")
    srd(a, SWS, 60, WS_SIZE)
    srd(a, SH, 64, 4194304)
    srd(a, SD, 66, 2048)

    a.e(f"v_lshlrev_b32 {v(t0)}, 4, {v(VLANE)}")
    a.e(f"s_lshl_b32 {s(s_t)}, {s(s_ch)}, 12")
    for q in range(4):
        a.e(f"s_add_u32 m0, {s(s_lb)}, {H0 + 128 + q*1024}")
        a.e(f"s_add_u32 {s(s_t2)}, {s(s_t)}, {q*1024}")
        a.e(f"buffer_load_dwordx4 {v(t0)}, {s(SH,4)}, {s(s_t2)} offen lds")
    for q in range(4):
        a.e(f"s_add_u32 m0, {s(s_lb)}, {H1 + 144 + q*1024}")
        a.e(f"s_add_u32 {s(s_t2)}, {s(s_t)}, {14 + q*1024}")
        a.e(f"buffer_load_dwordx4 {v(t0)}, {s(SH,4)}, {s(s_t2)} offen lds")
    a.e(f"s_mul_i32 {s(s_t)}, {s(s_ch)}, {XR_PITCH}")
    for c4 in range(4):
        beta = 6 - 2 * c4
        for q in range(4):
            a.e(f"s_add_u32 m0, {s(s_lb)}, {X0 + c4*XC_BYTES + q*1024}")
            a.e(f"s_add_u32 {s(s_t2)}, {s(s_t)}, {WS_XR + 2*beta + q*1024}")
            a.e(f"buffer_load_dwordx4 {v(t0)}, {s(SWS,4)}, {s(s_t2)} offen lds")
    a.e("s_mov_b64 exec, 0xffffff")
    for c4 in range(4):
        beta = 6 - 2 * c4
        a.e(f"s_add_u32 m0, {s(s_lb)}, {X0 + c4*XC_BYTES + 4096}")
        a.e(f"s_add_u32 {s(s_t2)}, {s(s_t)}, {WS_XR + 2*beta + 4096}")
        a.e(f"buffer_load_dwordx4 {v(t0)}, {s(SWS,4)}, {s(s_t2)} offen lds")
    a.e("s_mov_b64 exec, -1")
    HD = 200
    a.e(f"s_lshl_b32 {s(s_t)}, {s(s_ch)}, 12")
    a.e(f"v_mov_b32 {v(t1)}, 0")
    a.e(f"buffer_load_dwordx4 {v(HD,4)}, {v(t1)}, {s(SH,4)}, {s(s_t)} offen")
    a.e(f"s_lshl_b32 {s(s_t)}, {s(s_ch)}, 1")
    a.e(f"buffer_load_ushort {v(HD+8)}, {v(t1)}, {s(SD,4)}, {s(s_t)} offen")

    PQ = 0
    a.e(f"s_lshl_b32 {s(s_t)}, {s(s_head)}, 7")
    a.e(f"s_lshl_b32 {s(s_t2)}, {s(s_tb)}, 4")
    a.e(f"s_add_u32 {s(s_t)}, {s(s_t)}, {s(s_t2)}")
    a.e(f"s_lshl_b32 {s(s_t2)}, {s(s_w)}, 2")
    a.e(f"s_add_u32 {s(s_t)}, {s(s_t)}, {s(s_t2)}")
    a.e(f"s_lshl_b32 {s(s_t)}, {s(s_t)}, 11")
    a.e(f"s_add_u32 {s(s_t)}, {s(s_t)}, {WS_PHIQ}")
    a.e(f"s_add_u32 {s(s_t2)}, {s(s_t)}, 4096")
    for i in range(4):
        for sg_ in range(2):
            off = i * 2048 + sg_ * 1024
            a.e(f"buffer_load_dwordx4 {v(PQ+(i*2+sg_)*4,4)}, {v(t0)}, {s(SWS,4)}, {s(s_t if off < 4096 else s_t2)} offen offset:{off % 4096}")
    PL = 32
    SUM = 128
    a.e(f"s_lshl_b32 {s(s_t)}, {s(s_head)}, 4")
    a.e(f"s_mul_i32 {s(s_t)}, {s(s_t)}, {KVP_STRIDE}")
    a.e(f"s_add_u32 {s(s_t)}, {s(s_t)}, {WS_KVP}")
    a.e(f"s_lshl_b32 {s(s_t2)}, {s(s_w)}, 11")
    a.e(f"v_add_u32 {v(t1)}, {s(s_t2)}, {v(t0)}")
    a.e(f"v_lshrrev_b32 {v(t2)}, 4, {v(VLANE)}")
    a.e(f"v_lshlrev_b32 {v(t2)}, 4, {v(t2)}")
    a.e(f"s_lshl_b32 {s(s_t2)}, {s(s_w)}, 6")
    a.e(f"s_add_u32 {s(s_t2)}, {s(s_t2)}, 8192")
    a.e(f"v_add_u32 {v(t2)}, {s(s_t2)}, {v(t2)}")
    for bt in range(2):
        for i in range(8):
            a.e(f"buffer_load_dwordx4 {v(PL+i*12,4)}, {v(t1)}, {s(SWS,4)}, {s(s_t)} offen")
            a.e(f"buffer_load_dwordx4 {v(PL+i*12+4,4)}, {v(t1)}, {s(SWS,4)}, {s(s_t)} offen offset:1024")
            a.e(f"buffer_load_dwordx4 {v(PL+i*12+8,4)}, {v(t2)}, {s(SWS,4)}, {s(s_t)} offen")
            a.e(f"s_add_u32 {s(s_t)}, {s(s_t)}, {KVP_STRIDE}")
        a.e("s_waitcnt vmcnt(0)")
        for i in range(8):
            for r in range(12):
                if bt == 0 and i == 0:
                    continue
                if bt == 0 and i == 1:
                    a.e(f"v_add_f32 {v(SUM+r)}, {v(PL+r)}, {v(PL+12+r)}")
                else:
                    a.e(f"v_add_f32 {v(SUM+r)}, {v(SUM+r)}, {v(PL+i*12+r)}")
    a.e(f"v_mov_b32 {v(HD+4)}, 0")
    a.e(f"v_mov_b32 {v(HD+5)}, 0")
    a.e(f"v_mov_b32 {v(HD+6)}, 0")
    a.e(f"v_mov_b32 {v(HD+7)}, 0")
    a.e(f"v_add_u32 {v(t3)}, {s(s_lb)}, {v(t0)}")
    a.e("s_mov_b64 exec, 0xff")
    a.e(f"ds_write_b128 {v(t3)}, {v(HD+4,4)} offset:{H0}")
    a.e(f"ds_write_b128 {v(t3)}, {v(HD+4,4)} offset:{H1}")
    a.e("s_mov_b64 exec, 1")
    a.e(f"v_lshlrev_b32 {v(HD+4)}, 16, {v(HD)}")
    a.e(f"v_alignbit_b32 {v(HD+5)}, {v(HD+1)}, {v(HD)}, 16")
    a.e(f"v_alignbit_b32 {v(HD+6)}, {v(HD+2)}, {v(HD+1)}, 16")
    a.e(f"v_alignbit_b32 {v(HD+7)}, {v(HD+3)}, {v(HD+2)}, 16")
    a.e(f"ds_write_b128 {v(t3)}, {v(HD+4,4)} offset:{H1+128}")
    a.e("s_mov_b64 exec, -1")
    for dt in range(3):
        a.e(f"v_cvt_pk_bf16_f32 {v(SUM+12+2*dt)}, {v(SUM+4*dt)}, {v(SUM+4*dt+1)}")
        a.e(f"v_cvt_pk_bf16_f32 {v(SUM+12+2*dt+1)}, {v(SUM+4*dt+2)}, {v(SUM+4*dt+3)}")
    a.e(f"s_lshr_b32 {s(s_t)}, {s(s_w)}, 1")
    a.e(f"s_lshl_b32 {s(s_t)}, {s(s_t)}, 10")
    a.e(f"s_and_b32 {s(s_t2)}, {s(s_w)}, 1")
    a.e(f"s_lshl_b32 {s(s_t2)}, {s(s_t2)}, 3")
    a.e(f"s_add_u32 {s(s_t)}, {s(s_t)}, {s(s_t2)}")
    a.e(f"s_add_u32 {s(s_t)}, {s(s_t)}, {K2_FRAG}")
    a.e(f"v_add_u32 {v(t3)}, {s(s_t)}, {v(t0)}")
    for dt in range(3):
        a.e(f"ds_write_b64 {v(t3)}, {v(SUM+12+2*dt,2)} offset:{dt*2048}")
    a.e("s_waitcnt lgkmcnt(0)")
    a.e("s_barrier")
    KF = 32
    a.e(f"v_add_u32 {v(t3)}, {K2_FRAG}, {v(t0)}")
    for i in range(6):
        a.e(f"ds_read_b128 {v(KF+4*i,4)}, {v(t3)} offset:{i*1024}")
    a.e("s_waitcnt lgkmcnt(0)")
    a.e(f"s_lshl_b32 {s(s_t)}, {s(s_tb)}, 8")
    a.e(f"s_lshl_b32 {s(s_t2)}, {s(s_w)}, 6")
    a.e(f"s_add_u32 {s(s_t)}, {s(s_t)}, {s(s_t2)}")
    a.e(f"v_and_b32 {v(t1)}, 15, {v(VLANE)}")
    a.e(f"v_add_u32 {v(t1)}, {s(s_t)}, {v(t1)}")
    a.e(f"v_lshlrev_b32 {v(t1)}, 11, {v(t1)}")
    a.e(f"v_lshrrev_b32 {v(t2)}, 4, {v(VLANE)}")
    a.e(f"v_lshlrev_b32 {v(t2)}, 4, {v(t2)}")
    a.e(f"v_add_u32 {v(t1)}, {v(t1)}, {v(t2)}")
    a.e(f"s_lshl_b32 {s(s_t)}, {s(s_head)}, 6")
    a.e(f"s_add_u32 {s(s_t)}, {s(s_t)}, {WS_O}")
    a.e(f"v_add_u32 {v(t1)}, {s(s_t)}, {v(t1)}")
    a.e(f"s_mov_b32 {s(s_t2)}, 0x358637bd")
    ND = 64
    for i in range(4):
        for dt in range(3):
            for sg_ in range(2):
                a.e(mfma(ND + i * 12 + dt * 4, KF + (dt * 2 + sg_) * 4, PQ + (i * 2 + sg_) * 4, "0" if sg_ == 0 else None))
    a.nop(9)
    OO = 112
    for i in range(4):
        n_ = ND + i * 12
        d_ = n_ + 8
        a.e(f"v_cvt_pk_bf16_f32 {v(d_)}, 0, {v(d_)}")
        a.e(f"v_add_f32 {v(d_)}, {s(s_t2)}, {v(d_)}")
        a.e(f"v_cvt_pk_bf16_f32 {v(d_)}, 0, {v(d_)}")
        a.e(f"v_rcp_f32 {v(d_)}, {v(d_)}")
        for r in range(8):
            a.e(f"v_cvt_pk_bf16_f32 {v(n_+r)}, 0, {v(n_+r)}")
        for r in range(8):
            a.e(f"v_mul_f32 {v(n_+r)}, {v(n_+r)}, {v(d_)}")
        for r in range(4):
            a.e(f"v_cvt_pk_bf16_f32 {v(OO+i*4+r)}, {v(n_+2*r)}, {v(n_+2*r+1)}")
    for i in range(4):
        a.e(f"buffer_store_dwordx4 {v(OO+i*4,4)}, {v(t1)}, {s(SWS,4)}, 0 offen")
        if i < 3:
            a.e(f"v_add_u32 {v(t1)}, {16*2048}, {v(t1)}")

    a.c("conv")
    YA = 0
    FA = [32, 96]
    FB = [64, 128]
    VA_ = 160
    VB_ = 161
    a.e(f"v_and_b32 {v(t1)}, 15, {v(VLANE)}")
    a.e(f"v_lshrrev_b32 {v(t2)}, 4, {v(VLANE)}")
    a.e(f"v_lshrrev_b32 {v(t3)}, 1, {v(t1)}")
    a.e(f"v_add_u32 {v(t3)}, {v(t3)}, {v(t2)}")
    a.e(f"v_lshlrev_b32 {v(t3)}, 4, {v(t3)}")
    a.e(f"v_and_b32 {v(VA_)}, 1, {v(t1)}")
    a.e(f"v_sub_u32 {v(VA_)}, 1, {v(VA_)}")
    a.e(f"s_movk_i32 {s(s_t)}, {H1 - H0}")
    a.e(f"v_mul_lo_u32 {v(VA_)}, {v(VA_)}, {s(s_t)}")
    a.e(f"v_add_u32 {v(VA_)}, {v(VA_)}, {v(t3)}")
    a.e(f"s_add_u32 {s(s_t)}, {s(s_lb)}, {H0 + 16}")
    a.e(f"v_add_u32 {v(VA_)}, {s(s_t)}, {v(VA_)}")
    a.e(f"v_and_b32 {v(VB_)}, 3, {v(t1)}")
    a.e(f"s_movk_i32 {s(s_t)}, {XC_BYTES}")
    a.e(f"v_mul_lo_u32 {v(VB_)}, {v(VB_)}, {s(s_t)}")
    a.e(f"v_lshrrev_b32 {v(t3)}, 2, {v(t1)}")
    a.e(f"v_lshlrev_b32 {v(t3)}, 7, {v(t3)}")
    a.e(f"v_sub_u32 {v(VB_)}, {v(VB_)}, {v(t3)}")
    a.e(f"v_lshlrev_b32 {v(t3)}, 4, {v(t2)}")
    a.e(f"v_add_u32 {v(VB_)}, {v(VB_)}, {v(t3)}")
    a.e(f"s_add_u32 {s(s_t)}, {s(s_lb)}, {X0 + 2*1984 - 64*56}")
    a.e(f"v_add_u32 {v(VB_)}, {s(s_t)}, {v(VB_)}")
    a.e("s_waitcnt lgkmcnt(0)")

    def conv_reads(r, buf):
        g = []
        for m in range(8):
            g.append([f"ds_read_b128 {v(FA[buf]+4*m,4)}, {v(VA_)} offset:{64*(8*m+r)}"])
            vv = 8 * m - r
            g.append([f"ds_read_b128 {v(FB[buf]+4*m,4)}, {v(VB_)} offset:{64*(56-vv)}"])
        return g

    for grp in conv_reads(0, 0):
        for x in grp:
            a.e(x)
    for r in range(8):
        buf = r & 1
        a.e("s_waitcnt lgkmcnt(0)")
        L = []
        for t in range(8):
            for m in range(t + 1):
                w_ = t - m
                first = (r == 0 and m == 0)
                L.append(mfma(YA + 4 * t, FA[buf] + 4 * m, FB[buf] + 4 * w_, "0" if first else None))
        oth = conv_reads(r + 1, buf ^ 1) if r < 7 else []
        interleave(a, L, oth, lead=8)
    a.e(f"v_lshlrev_b32 {v(HD+8)}, 16, {v(HD+8)}")
    VX = 162
    VS = 163
    a.e(f"v_lshlrev_b32 {v(VS)}, 4, {v(t2)}")
    a.e(f"v_and_b32 {v(t3)}, 3, {v(t1)}")
    a.e(f"v_lshlrev_b32 {v(t3)}, 1, {v(t3)}")
    a.e(f"v_add_u32 {v(VS)}, {v(VS)}, {v(t3)}")
    a.e(f"v_lshrrev_b32 {v(t3)}, 2, {v(t1)}")
    a.e(f"v_lshlrev_b32 {v(t3)}, 6, {v(t3)}")
    a.e(f"v_add_u32 {v(VS)}, {v(VS)}, {v(t3)}")
    a.e(f"v_lshlrev_b32 {v(VS)}, 1, {v(VS)}")
    a.e(f"s_add_u32 {s(s_t)}, {s(s_lb)}, {X0 + 3*XC_BYTES + 2*2046 - (512*7+16)}")
    a.e(f"v_sub_u32 {v(VX)}, {s(s_t)}, {v(VS)}")
    KX = 32
    for t in range(8):
        for h2 in range(2):
            a.e(f"ds_read_b32 {v(KX+2*t+h2)}, {v(VX)} offset:{(512*7+16) - (512*t+16*h2)}")
    a.e(f"s_lshl_b32 {s(s_t)}, {s(s_ch)}, 12")
    a.e(f"s_add_u32 {s(s_t)}, {s(s_t)}, {WS_YT}")
    a.e(f"v_add_u32 {v(VS)}, {s(s_t)}, {v(VS)}")
    a.e("s_waitcnt lgkmcnt(0)")
    a.nop(4)
    T0 = 64
    for t in range(8):
        for h2 in range(2):
            y0 = YA + 4 * t + 2 * h2
            kx = KX + 2 * t + h2
            a.e(f"v_and_b32 {v(T0)}, 0xffff0000, {v(kx)}")
            a.e(f"v_lshlrev_b32 {v(T0+1)}, 16, {v(kx)}")
            a.e(f"v_mul_f32 {v(T0)}, {v(T0)}, {v(HD+8)}")
            a.e(f"v_mul_f32 {v(T0+1)}, {v(T0+1)}, {v(HD+8)}")
            a.e(f"v_cvt_pk_bf16_f32 {v(T0)}, 0, {v(T0)}")
            a.e(f"v_cvt_pk_bf16_f32 {v(T0+1)}, 0, {v(T0+1)}")
            a.e(f"v_cvt_pk_bf16_f32 {v(y0)}, 0, {v(y0)}")
            a.e(f"v_cvt_pk_bf16_f32 {v(y0+1)}, 0, {v(y0+1)}")
            a.e(f"v_add_f32 {v(T0)}, {v(T0)}, {v(y0)}")
            a.e(f"v_add_f32 {v(T0+1)}, {v(T0+1)}, {v(y0+1)}")
            a.e(f"v_cvt_pk_bf16_f32 {v(96+2*t+h2)}, {v(T0)}, {v(T0+1)}")
    for t in range(8):
        for h2 in range(2):
            a.e(f"buffer_store_dword {v(96+2*t+h2)}, {v(VS)}, {s(SWS,4)}, 0 offen offset:{512*t+16*h2}")
    a.label("K2_END")
    a.e("s_endpgm")
    return kernel_desc(name, 256, 80)


K3_NST = 4
K3_ASLOT = 16384
K3_BSLOT = 8192
K3_BRING = K3_NST * K3_ASLOT
K3_LDS = K3_NST * (K3_ASLOT + K3_BSLOT)


def k3(a):
    name = "k3_kernel"
    kernel_header(a, name)
    SWS, SWO, SOUT, SQ = 4, 8, 12, 16
    s_w, s_wm, s_wn, s_rb, s_cg, s_mA, s_mB, s_kA, s_kB, s_t, s_t2 = range(32, 43)
    a.e("s_cmp_ge_u32 s2, 256")
    a.e("s_cbranch_scc1 K3_END")
    a.e("s_load_dwordx2 s[60:61], s[0:1], 96")
    a.e("s_load_dwordx4 s[64:67], s[0:1], 72")
    a.e("s_load_dwordx2 s[68:69], s[0:1], 0")
    ACC = 0
    F0 = 32
    F1 = 56
    VGA = 80
    VGB = 84
    VLA = 86
    VLB = 88
    VLANE = 90
    VTID = 91
    VT = 92
    t0, t1, t2, t3 = VT, VT + 1, VT + 2, VT + 3
    a.e(f"v_mov_b32 {v(VTID)}, v0")
    a.e(f"v_and_b32 {v(VLANE)}, 63, v0")
    a.e(f"v_lshrrev_b32 {v(VT)}, 6, v0")
    a.nop(1)
    a.e(f"v_readfirstlane_b32 {s(s_w)}, {v(VT)}")
    a.e(f"s_and_b32 {s(s_t)}, s2, 7")
    a.e(f"s_lshr_b32 {s(s_t2)}, s2, 3")
    a.e(f"s_and_b32 {s(s_rb)}, {s(s_t)}, 1")
    a.e(f"s_lshl_b32 {s(s_rb)}, {s(s_rb)}, 3")
    a.e(f"s_and_b32 {s(s_cg)}, {s(s_t2)}, 7")
    a.e(f"s_add_u32 {s(s_rb)}, {s(s_rb)}, {s(s_cg)}")
    a.e(f"s_lshr_b32 {s(s_cg)}, {s(s_t)}, 1")
    a.e(f"s_lshl_b32 {s(s_cg)}, {s(s_cg)}, 2")
    a.e(f"s_lshr_b32 {s(s_t2)}, {s(s_t2)}, 3")
    a.e(f"s_add_u32 {s(s_cg)}, {s(s_cg)}, {s(s_t2)}")
    a.e(f"s_lshr_b32 {s(s_wm)}, {s(s_w)}, 1")
    a.e(f"s_and_b32 {s(s_wn)}, {s(s_w)}, 1")
    a.e(f"s_lshl_b32 {s(s_mA)}, {s(s_w)}, 12")
    a.e(f"s_lshl_b32 {s(s_mB)}, {s(s_w)}, 11")
    a.e(f"s_add_u32 {s(s_mB)}, {s(s_mB)}, {K3_BRING}")
    a.e("s_waitcnt lgkmcnt(0)")
    srd(a, SWS, 60, WS_SIZE)
    srd(a, SWO, 64, 2097152)
    srd(a, SOUT, 66, 8388608)
    srd(a, SQ, 68, 4194304)
    a.e(f"s_lshl_b32 {s(s_t)}, {s(s_rb)}, 7")
    a.e(f"s_lshl_b32 {s(s_t2)}, {s(s_w)}, 5")
    a.e(f"s_add_u32 {s(s_t)}, {s(s_t)}, {s(s_t2)}")
    a.e(f"v_lshrrev_b32 {v(t0)}, 3, {v(VLANE)}")
    a.e(f"v_add_u32 {v(t0)}, {s(s_t)}, {v(t0)}")
    a.e(f"v_lshlrev_b32 {v(t0)}, 11, {v(t0)}")
    a.e(f"v_add_u32 {v(t0)}, {WS_O}, {v(t0)}")
    a.e(f"v_lshrrev_b32 {v(t1)}, 4, {v(VLANE)}")
    a.e(f"v_and_b32 {v(t2)}, 7, {v(VLANE)}")
    for j in range(4):
        a.e(f"v_add_u32 {v(t3)}, {4*(j&1)}, {v(t1)}")
        a.e(f"v_xor_b32 {v(t3)}, {v(t3)}, {v(t2)}")
        a.e(f"v_lshlrev_b32 {v(t3)}, 4, {v(t3)}")
        a.e(f"v_add_u32 {v(t3)}, {v(t3)}, {v(t0)}")
        a.e(f"v_add_u32 {v(VGA+j)}, {j*8*2048}, {v(t3)}")
    a.e(f"s_lshl_b32 {s(s_t)}, {s(s_w)}, 4")
    a.e(f"v_lshrrev_b32 {v(t0)}, 3, {v(VLANE)}")
    a.e(f"v_add_u32 {v(t0)}, {s(s_t)}, {v(t0)}")
    a.e(f"v_lshlrev_b32 {v(t0)}, 11, {v(t0)}")
    a.e(f"s_lshl_b32 {s(s_t)}, {s(s_cg)}, 7")
    a.e(f"v_add_u32 {v(t0)}, {s(s_t)}, {v(t0)}")
    a.e(f"v_bfe_u32 {v(t1)}, {v(VLANE)}, 4, 2")
    a.e(f"v_bfe_u32 {v(t2)}, {v(VLANE)}, 1, 2")
    a.e(f"v_xor_b32 {v(t3)}, {v(t1)}, {v(t2)}")
    a.e(f"v_lshlrev_b32 {v(t3)}, 1, {v(t3)}")
    a.e(f"v_and_b32 {v(VT+4)}, 1, {v(VLANE)}")
    a.e(f"v_or_b32 {v(t3)}, {v(t3)}, {v(VT+4)}")
    a.e(f"v_lshlrev_b32 {v(t3)}, 4, {v(t3)}")
    a.e(f"v_add_u32 {v(VGB)}, {v(t3)}, {v(t0)}")
    a.e(f"v_add_u32 {v(VGB+1)}, {8*2048}, {v(VGB)}")

    def dma_stage(st):
        sl = st % K3_NST
        g = []
        for j in range(4):
            g.append([f"s_add_u32 m0, {s(s_mA)}, {sl*K3_ASLOT + j*1024}",
                      "s_nop 0",
                      f"buffer_load_dwordx4 {v(VGA+j)}, {s(SWS,4)}, {s(s_kA)} offen lds"])
        for jj in range(2):
            g.append([f"s_add_u32 m0, {s(s_mB)}, {sl*K3_BSLOT + jj*1024}",
                      "s_nop 0",
                      f"buffer_load_dwordx4 {v(VGB+jj)}, {s(SWO,4)}, {s(s_kB)} offen lds"])
        g.append([f"s_add_u32 {s(s_kA)}, {s(s_kA)}, 128",
                  f"s_add_u32 {s(s_kB)}, {s(s_kB)}, {64*2048}"])
        return g
    a.e(f"s_mov_b32 {s(s_kA)}, 0")
    a.e(f"s_mov_b32 {s(s_kB)}, 0")
    for st in range(K3_NST):
        for grp in dma_stage(st):
            for x in grp:
                a.e(x)
    a.e(f"v_and_b32 {v(t0)}, 15, {v(VLANE)}")
    a.e(f"v_lshrrev_b32 {v(t1)}, 4, {v(VLANE)}")
    a.e(f"v_lshrrev_b32 {v(t2)}, 1, {v(t0)}")
    a.e(f"v_xor_b32 {v(t2)}, {v(t2)}, {v(t1)}")
    a.e(f"v_lshlrev_b32 {v(t2)}, 4, {v(t2)}")
    a.e(f"s_lshl_b32 {s(s_t)}, {s(s_wm)}, 6")
    a.e(f"v_add_u32 {v(t3)}, {s(s_t)}, {v(t0)}")
    a.e(f"v_lshlrev_b32 {v(t3)}, 7, {v(t3)}")
    a.e(f"v_add_u32 {v(VLA)}, {v(t3)}, {v(t2)}")
    a.e(f"v_xor_b32 {v(VLA+1)}, 64, {v(VLA)}")
    a.e(f"v_bfe_u32 {v(t0)}, {v(VLANE)}, 2, 2")
    a.e(f"v_lshrrev_b32 {v(t2)}, 1, {v(t0)}")
    a.e(f"v_and_b32 {v(t3)}, 1, {v(t1)}")
    a.e(f"v_lshlrev_b32 {v(t3)}, 1, {v(t3)}")
    a.e(f"v_or_b32 {v(t2)}, {v(t2)}, {v(t3)}")
    a.e(f"v_bfe_u32 {v(t3)}, {v(VLANE)}, 1, 1")
    a.e(f"s_lshl_b32 {s(s_t)}, {s(s_wn)}, 1")
    a.e(f"v_add_u32 {v(t3)}, {s(s_t)}, {v(t3)}")
    a.e(f"v_xor_b32 {v(t2)}, {v(t2)}, {v(t3)}")
    a.e(f"v_lshlrev_b32 {v(t2)}, 5, {v(t2)}")
    a.e(f"v_lshlrev_b32 {v(t3)}, 2, {v(t1)}")
    a.e(f"v_add_u32 {v(t3)}, {v(t3)}, {v(t0)}")
    a.e(f"v_lshlrev_b32 {v(t3)}, 7, {v(t3)}")
    a.e(f"v_add_u32 {v(t2)}, {v(t2)}, {v(t3)}")
    a.e(f"v_and_b32 {v(t3)}, 1, {v(VLANE)}")
    a.e(f"v_lshlrev_b32 {v(t3)}, 4, {v(t3)}")
    a.e(f"v_add_u32 {v(t2)}, {v(t2)}, {v(t3)}")
    a.e(f"v_add_u32 {v(VLB)}, {K3_BRING}, {v(t2)}")

    EY = 100
    EQ = 116
    EO = 132
    EA = 148
    a.e(f"s_lshr_b32 {s(s_t)}, s2, 4")
    a.e(f"s_lshl_b32 {s(s_t)}, {s(s_t)}, 7")
    a.e(f"s_and_b32 {s(s_t2)}, s2, 15")
    a.e(f"s_lshl_b32 {s(s_t2)}, {s(s_t2)}, 6")
    a.e(f"v_lshrrev_b32 {v(EA)}, 3, {v(VTID)}")
    a.e(f"v_lshlrev_b32 {v(EA)}, 2, {v(EA)}")
    a.e(f"v_add_u32 {v(EA)}, {s(s_t)}, {v(EA)}")
    a.e(f"v_and_b32 {v(EA+1)}, 7, {v(VTID)}")
    a.e(f"v_lshlrev_b32 {v(EA+1)}, 3, {v(EA+1)}")
    a.e(f"v_add_u32 {v(EA+1)}, {s(s_t2)}, {v(EA+1)}")
    a.e(f"v_lshlrev_b32 {v(EA+2)}, 12, {v(EA+1)}")
    a.e(f"v_lshlrev_b32 {v(EA+3)}, 1, {v(EA)}")
    a.e(f"v_add_u32 {v(EA+2)}, {v(EA+2)}, {v(EA+3)}")
    a.e(f"v_add_u32 {v(EA+2)}, {WS_YT}, {v(EA+2)}")
    for ch in range(8):
        a.e(f"buffer_load_dwordx2 {v(EY+2*ch,2)}, {v(EA+2)}, {s(SWS,4)}, 0 offen")
        if ch < 7:
            a.e(f"v_add_u32 {v(EA+2)}, 4096, {v(EA+2)}")
    a.e(f"v_lshlrev_b32 {v(EA+2)}, 11, {v(EA)}")
    a.e(f"v_lshlrev_b32 {v(EA+3)}, 1, {v(EA+1)}")
    a.e(f"v_add_u32 {v(EA+2)}, {v(EA+2)}, {v(EA+3)}")
    a.e(f"v_add_u32 {v(EA+4)}, 4096, {v(EA+2)}")
    for r in range(4):
        a.e(f"buffer_load_dwordx4 {v(EQ+4*r,4)}, {v(EA+2 if r < 2 else EA+4)}, {s(SQ,4)}, 0 offen offset:{(r&1)*2048}")
    a.e(f"v_lshlrev_b32 {v(EA+2)}, 12, {v(EA)}")
    a.e(f"v_add_u32 {v(EA+2)}, {v(EA+2)}, {v(EA+3)}")
    a.e("s_waitcnt vmcnt(0)")
    T0 = 92
    for r in range(4):
        for cp in range(4):
            for hh in range(2):
                ch = 2 * cp + hh
                yreg = EY + 2 * ch + (r >> 1)
                qreg = EQ + 4 * r + cp
                if r & 1:
                    a.e(f"v_and_b32 {v(T0+hh)}, 0xffff0000, {v(yreg)}")
                else:
                    a.e(f"v_lshlrev_b32 {v(T0+hh)}, 16, {v(yreg)}")
                if hh:
                    a.e(f"v_and_b32 {v(T0+2+hh)}, 0xffff0000, {v(qreg)}")
                else:
                    a.e(f"v_lshlrev_b32 {v(T0+2+hh)}, 16, {v(qreg)}")
                a.e(f"v_mul_f32 {v(T0+hh)}, {v(T0+hh)}, {v(T0+2+hh)}")
            a.e(f"v_cvt_pk_bf16_f32 {v(EO+4*r+cp)}, {v(T0)}, {v(T0+1)}")
    for r in range(4):
        a.e(f"buffer_store_dwordx4 {v(EO+4*r,4)}, {v(EA+2)}, {s(SOUT,4)}, 0 offen")
        if r < 3:
            a.e(f"v_add_u32 {v(EA+2)}, 4096, {v(EA+2)}")

    def frag_reads(F, st, ks):
        sl = st % K3_NST
        g = []
        for am in range(4):
            g.append([f"ds_read_b128 {v(F+4*am,4)}, {v(VLA+ks)} offset:{sl*K3_ASLOT + am*2048}"])
        for nt in range(2):
            for hf in range(2):
                g.append([f"ds_read_b64_tr_b16 {v(F+16+nt*4+2*hf,2)}, {v(VLB)} offset:{sl*K3_BSLOT + ks*4096 + hf*2048 + nt*8}"])
        return g

    def mfmas(F, first):
        L = []
        for am in range(4):
            for nt in range(2):
                L.append(mfma(ACC + (am * 2 + nt) * 4, F + 16 + nt * 4, F + 4 * am, "0" if first else None))
        return L
    a.e("s_waitcnt vmcnt(0)")
    a.e("s_barrier")
    for grp in frag_reads(F0, 0, 0):
        for x in grp:
            a.e(x)
    a.e("s_waitcnt lgkmcnt(0)")
    NIT = 16
    for it in range(NIT):
        interleave(a, mfmas(F0, it == 0), frag_reads(F1, it, 1), lead=2)
        if it < NIT - 1:
            outstanding = min(NIT - 1, it + K3_NST - 1) - (it + 1)
            a.e(f"s_waitcnt vmcnt({6*outstanding}) lgkmcnt(0)")
            a.e("s_barrier")
        else:
            a.e("s_waitcnt lgkmcnt(0)")
        rd = frag_reads(F0, it + 1, 0) if it + 1 < NIT else []
        dm = dma_stage(it + K3_NST) if it + K3_NST < NIT else []
        interleave(a, mfmas(F1, False), rd + dm, lead=3)
        a.e("s_waitcnt lgkmcnt(0)")
    a.nop(9)
    a.e(f"s_lshl_b32 {s(s_t)}, {s(s_rb)}, 7")
    a.e(f"s_lshl_b32 {s(s_t2)}, {s(s_wm)}, 6")
    a.e(f"s_add_u32 {s(s_t)}, {s(s_t)}, {s(s_t2)}")
    a.e(f"v_and_b32 {v(t0)}, 15, {v(VLANE)}")
    a.e(f"v_add_u32 {v(t0)}, {s(s_t)}, {v(t0)}")
    a.e(f"v_lshlrev_b32 {v(t0)}, 12, {v(t0)}")
    a.e(f"v_lshrrev_b32 {v(t1)}, 4, {v(VLANE)}")
    a.e(f"v_lshlrev_b32 {v(t1)}, 4, {v(t1)}")
    a.e(f"v_add_u32 {v(t0)}, {v(t0)}, {v(t1)}")
    a.e(f"s_lshl_b32 {s(s_t)}, {s(s_cg)}, 7")
    a.e(f"s_lshl_b32 {s(s_t2)}, {s(s_wn)}, 6")
    a.e(f"s_add_u32 {s(s_t)}, {s(s_t)}, {s(s_t2)}")
    a.e(f"s_add_u32 {s(s_t)}, {s(s_t)}, 2048")
    a.e(f"v_add_u32 {v(t0)}, {s(s_t)}, {v(t0)}")
    for am in range(4):
        for nt in range(2):
            ac = ACC + (am * 2 + nt) * 4
            a.e(f"v_cvt_pk_bf16_f32 {v(F0+am*4+nt*2)}, {v(ac)}, {v(ac+1)}")
            a.e(f"v_cvt_pk_bf16_f32 {v(F0+am*4+nt*2+1)}, {v(ac+2)}, {v(ac+3)}")
    for am in range(4):
        a.e(f"buffer_store_dwordx4 {v(F0+am*4,4)}, {v(t0)}, {s(SOUT,4)}, 0 offen")
        if am < 3:
            a.e(f"v_add_u32 {v(t0)}, {16*4096}, {v(t0)}")
    a.label("K3_END")
    a.e("s_endpgm")
    return kernel_desc(name, 160, 80)


def main():
    hdr = open("concat_heads__ssm_conv_h3__linear_kernel_hedgehog__prompt.s.ref").read().splitlines()
    out = []
    for l in hdr:
        if l.startswith("; @launch") or l.startswith("; Override") or l.startswith("; grid="):
            continue
        if l.startswith(";"):
            out.append(l)
        else:
            break
    out.append(f"; @launch kernel=k1_kernel grid=(256,1,1) block=(256,1,1) lds={K1_LDS}")
    out.append(f"; @launch kernel=k2_kernel grid=(256,1,1) block=(256,1,1) lds={K2_LDS}")
    out.append(f"; @launch kernel=k3_kernel grid=(256,1,1) block=(256,1,1) lds={K3_LDS}")
    out.append('.amdgcn_target "amdgcn-amd-amdhsa--gfx950"')
    out.append(".text")
    a = Asm()
    descs = []
    descs.append(k1(a))
    descs.append(k2(a))
    descs.append(k3(a))
    txt = "\n".join(out) + "\n" + a.text() + '.section .rodata,"a"\n' + "".join(descs)
    path = sys.argv[1] if len(sys.argv) > 1 else "concat_heads__ssm_conv_h3__linear_kernel_hedgehog__prompt.s"
    open(path, "w").write(txt)


if __name__ == "__main__":
    main()
```
